```python
import torch

def _softmax(x, axis=-1):
    return torch.softmax(x, dim=axis)
def _gelu(x):
    return torch.nn.functional.gelu(x, approximate="tanh")
def _silu(x):
    return torch.nn.functional.silu(x)
def _sigmoid(x):
    return torch.sigmoid(x)
def _layernorm(x, axis=-1, eps=1e-5):
    m = x.mean(dim=axis, keepdim=True)
    v = x.var(dim=axis, keepdim=True, unbiased=False)
    return (x - m) / torch.sqrt(v + eps)
def _scatter_add(tgt, idx, src, axis=0):
    return tgt.clone().index_add_(axis, idx, src)
def _segment_sum(src, seg, n):
    out = torch.zeros((n,) + src.shape[1:], dtype=src.dtype)
    return out.index_add_(0, seg, src)
def _pad(x, pw):
    flat = tuple(v for pair in reversed(pw) for v in pair)
    return torch.nn.functional.pad(x, flat)

kernel_name = 'recurrent_scan__sliding_block_cached__geglu_ffn__decode'

def setup_inputs():

    _w = (lambda a: (lambda t: t.to(torch.bfloat16) if t.is_floating_point() else t)(torch.as_tensor(a)))
    def _A_setup():
        B, Sq, D = 1, 1, 512
        Hq, Hkv, Sk, Dh = 32, 8, 65536, 128
        assert Hq % Hkv == 0, (Hq, Hkv)
        return {
            "x": _w((lambda *s: torch.randn(*s, dtype=torch.bfloat16) * 0.05)(B, Sq, D)),
            "k_cache": _w((lambda *s: torch.randn(*s, dtype=torch.bfloat16) * 1.6)(B, Hkv, Sk, Dh)),
            "v_cache": _w((lambda *s: torch.randn(*s, dtype=torch.bfloat16) * 0.2)(B, Hkv, Sk, Dh)),
            "wq": _w((lambda *s: torch.randn(*s, dtype=torch.bfloat16) * 1.6)(D, Hq * Dh) * (D ** -0.5)),
            "wo": _w((lambda *s: torch.randn(*s, dtype=torch.bfloat16) * 0.2)(Hq * Dh, D) * ((Hq * Dh) ** -0.5)),
        }
    _A_in = _A_setup()

    def _B_setup():
        B, S, D, F = 1, 1, 512, 1792
        return {
            "x": _w((lambda *s: torch.randn(*s, dtype=torch.bfloat16) * 0.05)(B, S, D)),
            "w_gate": _w((lambda *s: torch.randn(*s, dtype=torch.bfloat16) * 0.1)(D, F)),
            "w_up": _w((lambda *s: torch.randn(*s, dtype=torch.bfloat16) * 0.1)(D, F)),
            "w_down": _w((lambda *s: torch.randn(*s, dtype=torch.bfloat16) * 0.1)(F, D)),
        }
    _B_in = _B_setup()

    return {
        "A_x": _A_in["x"],
        "A_k_cache": _A_in["k_cache"],
        "A_v_cache": _A_in["v_cache"],
        "A_wq": _A_in["wq"],
        "A_wo": _A_in["wo"],
        "B_x": _B_in["x"],
        "B_w_gate": _B_in["w_gate"],
        "B_w_up": _B_in["w_up"],
        "B_w_down": _B_in["w_down"],
    }

def reference(A_x, A_k_cache, A_v_cache, A_wq, A_wo, B_x, B_w_gate, B_w_up, B_w_down):
    def _A_ref(x, k_cache, v_cache, wq, wo):
        B, Sq, D = x.shape
        Hq, Dh = 32, 128
        Hkv, Sk = k_cache.shape[1], k_cache.shape[2]
        W = min(4096, max(256, Sk // 4))
        rep = Hq // Hkv
        q = (lambda x, *d: x.permute(*d))((x @ wq).reshape(B, Sq, Hq, Dh), 0, 2, 1, 3)
        k = (lambda x, n, axis: torch.repeat_interleave(x, n, dim=axis))(k_cache[:, :, Sk - W:, :], rep, axis=1)
        v = (lambda x, n, axis: torch.repeat_interleave(x, n, dim=axis))(v_cache[:, :, Sk - W:, :], rep, axis=1)
        scores = torch.einsum("bhqd,bhkd->bhqk", q, k) * (Dh ** -0.5)
        p = _softmax(scores, axis=-1)
        o = torch.einsum("bhqk,bhkd->bhqd", p, v)
        return (lambda x, *d: x.permute(*d))(o, 0, 2, 1, 3).reshape(B, Sq, Hq * Dh) @ wo

    def _B_ref(x, w_gate, w_up, w_down):
        return (_gelu(x @ w_gate) * (x @ w_up)) @ w_down

    x = A_x
    xn = _layernorm(x, axis=-1)
    s = _A_ref(xn, A_k_cache, A_v_cache, A_wq, A_wo)
    g = _silu(_B_ref(xn, B_w_gate, B_w_up, B_w_down))
    return x + s * g
```

```python
import re
TRANS = ('v_exp_f32','v_log_f32','v_rcp_f32','v_rsq_f32','v_sqrt_f32','v_sin_f32','v_cos_f32')
def regs(tok):
    tok = tok.strip().lstrip('-')
    m = re.fullmatch(r'abs\((.*)\)', tok)
    if m: tok = m.group(1)
    tok = tok.strip('|')
    m = re.fullmatch(r'([vsa])(\d+)', tok)
    if m: return {(m.group(1), int(m.group(2)))}
    m = re.fullmatch(r'([vsa])\[(\d+):(\d+)\]', tok)
    if m: return {(m.group(1), i) for i in range(int(m.group(2)), int(m.group(3))+1)}
    if tok == 'vcc': return {('s',106),('s',107)}
    if tok == 'vcc_lo': return {('s',106)}
    if tok == 'vcc_hi': return {('s',107)}
    if tok == 'm0': return {('s',124)}
    if tok == 'exec': return {('s',126),('s',127)}
    if tok == 'exec_lo': return {('s',126)}
    if tok == 'exec_hi': return {('s',127)}
    return set()
class Ins:
    def __init__(s, text):
        s.text = text
        t = text.split(';')[0].strip()
        p = t.split(None, 1)
        s.mn = p[0]
        rest = p[1] if len(p) > 1 else ''
        ops = [o.strip() for o in re.split(r',\s*(?![^\[]*\])', rest)] if rest else []
        s.mods = ''
        if ops:
            q = ops[-1].split(None, 1)
            ops[-1] = q[0]
            s.mods = q[1] if len(q) > 1 else ''
        s.ops = ops
        mn = s.mn
        s.mfma = mn.startswith('v_mfma')
        s.valu = mn.startswith('v_') and not s.mfma
        s.trans = any(mn.startswith(x) for x in TRANS)
        s.dpp = '_dpp' in mn
        s.perml = mn.startswith('v_permlane')
        s.rdlane = mn.startswith('v_readfirstlane') or mn.startswith('v_readlane')
        s.vmem = mn.startswith(('global_','buffer_','flat_'))
        s.ds = mn.startswith('ds_')
        s.salu = mn.startswith('s_') and not mn.startswith(('s_load','s_waitcnt','s_nop','s_barrier','s_cbranch','s_branch','s_endpgm','s_sleep','s_setprio','s_memtime','s_memrealtime','s_cmp','s_bitcmp'))
        s.ldsdma = s.vmem and ('_lds_' in mn or re.search(r'\blds\b', s.mods) is not None)
        s.store = s.vmem and ('store' in mn or 'atomic' in mn)
        R = [regs(o) for o in ops]
        s.w = set(); s.r = set(); s.c = set(); s.ab = set(); s.sdata=set()
        if s.mfma:
            s.w = R[0]; s.ab = R[1] | R[2]; s.c = R[3]; s.r = s.ab | s.c
        elif s.perml:
            s.w = R[0] | R[1]; s.r = R[0] | R[1]
        elif s.valu:
            s.w = set(R[0])
            k = 1
            if mn.startswith(('v_add_co','v_sub_co','v_addc_co','v_subb_co','v_div_scale','v_mad_u64')):
                s.w |= R[1]; k = 2
            for x in R[k:]: s.r |= x
            if mn.startswith(('v_fmac','v_dot2c')): s.r |= R[0]
            if mn.startswith('v_cndmask') and len(ops) == 3: s.r |= regs('vcc')
            s.src0 = R[1] if len(R) > 1 else set()
        elif s.vmem:
            if s.store:
                for x in R: s.r |= x
                s.sdata = R[1] if mn.startswith('global_') else R[0]
            elif s.ldsdma:
                for x in R: s.r |= x
            else:
                s.w = R[0]
                for x in R[1:]: s.r |= x
        elif s.ds:
            if mn.startswith(('ds_read','ds_bpermute','ds_permute','ds_swizzle')) or '_rtn' in mn:
                s.w = R[0]
                for x in R[1:]: s.r |= x
            else:
                for x in R: s.r |= x
        elif s.salu:
            if R: s.w = R[0]
            for x in R[1:]: s.r |= x
        s.states = 1
        if mn == 's_nop': s.states = int(ops[0], 0) + 1
def need(p, c):
    n = 0
    pv = {x for x in p.w if x[0] in 'va'}; ps = {x for x in p.w if x[0] == 's'}
    if p.valu:
        if c.dpp and pv & c.src0: n = max(n, 2)
        if c.perml and pv & c.r: n = max(n, 2)
        if c.mfma and pv & c.r: n = max(n, 2)
        if c.rdlane and pv & c.r: n = max(n, 1)
        if p.trans and c.valu and not c.trans and pv & c.r: n = max(n, 1)
        if p.trans and (c.mfma) and pv & c.r: n = max(n, 2)
        if ps:
            if c.valu and ps & c.r: n = max(n, 4 if c.rdlane else 2)
            if c.vmem and ps & c.r: n = max(n, 5)
        if 'sdwa' in p.mn or 'op_sel' in p.mods:
            if c.valu and pv & (c.r | c.w): n = max(n, 1)
    if p.mfma:
        if c.mfma:
            if p.w & c.ab: n = max(n, 8)
            if p.w & c.c and p.w != c.c: n = max(n, 6)
        elif c.valu:
            if p.w & (c.r | c.w): n = max(n, 8)
            if p.c & c.w: n = max(n, 3)
        elif c.vmem or c.ds:
            if p.w & (c.r | c.w): n = max(n, 8)
    if p.salu and ('s',124) in p.w and c.ldsdma: n = max(n, 1)
    if p.store and ('x3' in p.mn or 'x4' in p.mn) and (c.valu or c.ds or c.vmem or c.mfma) and p.sdata & c.w: n = max(n, 2)
    return n
class Emit:
    def __init__(s): s.lines = []; s.hist = []; s.npad = 0
    def raw(s, t): s.lines.append(t)
    def label(s, l): s.lines.append(l + ':')
    def __call__(s, text):
        for t in text.split('\n'):
            t = t.strip()
            if not t or t.startswith(';'):
                if t: s.lines.append('    ' + t)
                continue
            if t.endswith(':') or t.startswith('.'):
                s.lines.append(t); continue
            c = Ins(t)
            dist = 0; pad = 0
            for p in reversed(s.hist):
                if dist >= 10: break
                pad = max(pad, need(p, c) - dist)
                dist += p.states
            if pad > 0:
                nop = Ins(f's_nop {pad-1}')
                s.hist.append(nop); s.lines.append(f'    s_nop {pad-1}'); s.npad += 1
            s.hist.append(c); s.lines.append('    ' + t)
            if c.mn in ('s_branch','s_endpgm'): s.hist = []
    def text(s): return '\n'.join(s.lines) + '\n'
```

```python
import sys, os
sys.path.insert(0, os.path.dirname(os.path.abspath(__file__)))
from emit import Emit
KN = 'recurrent_scan__sliding_block_cached__geglu_ffn__decode_kernel'
WS_XCC=0x1000; WS_H1S=0x10000; WS_H1F=0x30000; WS_HF1=0x50000; WS_H2=0x80000; WS_H3=0x100000; WS_STAMP=0x200000
L_WQ=0; L_K=0x4000; L_V=0xC000; L_GU=0x14000; L_WO=0x18000; L_WD=0x1C000; MISC=0x1E000
O_LAND=0; O_FA=0x100; O_FD=0x110; O_MODE=0x120; O_MX=0x140; O_LS=0x180; O_HB=0x200; O_XN=0x400; O_QB=0x800; O_P=0x1000; O_ST=0x2000
LDS_BYTES = MISC + 0x4000
QBS = 272
LOG2E = 0x3FB8AA3B
HEADER = open(os.path.join(os.path.dirname(os.path.abspath(__file__)), 'header.txt')).read()

def gen(WG=6, N1=28, stamps=False, fast1=False, fast3=False, pol='nt', codepf=True, spin_sleep=True):
    A = Emit()
    uid = [0]
    def lab(p):
        uid[0] += 1; return f'L_{p}{uid[0]}'
    nst = [0]
    def stamp(i):
        if stamps: A(f's_memrealtime s[{64+2*i}:{65+2*i}]')
    def dump_stamps():
        if not stamps: return
        A('s_waitcnt lgkmcnt(0)')
        A('s_mov_b64 exec, 1')
        A('s_mul_i32 s40, s2, 6\ns_add_u32 s40, s40, s28\ns_lshl_b32 s40, s40, 7')
        A(f's_add_u32 s40, s40, {WS_STAMP}\nv_mov_b32 v2, s40')
        for i in range(14):
            A(f'v_mov_b32 v4, s{64+2*i}\nv_mov_b32 v5, s{65+2*i}\nglobal_store_dwordx2 v2, v[4:5], s[26:27] offset:{8*i}\ns_nop 1')
    def tmo():
        A('s_sub_u32 s63, s63, 1\ns_cbranch_scc1 L_end')
    def wait_land(thr, vaddr, vt, sleep=True):
        l0 = lab('wl'); l1 = lab('wd')
        A(f's_cmp_ge_u32 s62, {thr}\ns_cbranch_scc1 {l1}')
        A(f'{l0}:')
        A(f'ds_read_b32 {vt}, {vaddr}\ns_waitcnt lgkmcnt(0)\nv_readfirstlane_b32 s62, {vt}')
        A(f's_cmp_ge_u32 s62, {thr}\ns_cbranch_scc1 {l1}')
        if sleep and spin_sleep: A('s_sleep 1')
        tmo()
        A(f's_branch {l0}')
        A(f'{l1}:')
    def allred(v, t, op='v_add_f32', row=True):
        if row:
            for k in (8,4,2,1):
                A(f'{op}_dpp {v}, {v}, {v} row_ror:{k} row_mask:0xf bank_mask:0xf')
        xrow(v, t, op)
    def xrow(v, t, op='v_add_f32'):
        A(f'v_mov_b32 {t}, {v}\nv_permlane16_swap_b32 {t}, {v}\n{op} {v}, {t}, {v}')
        A(f'v_mov_b32 {t}, {v}\nv_permlane32_swap_b32 {t}, {v}\n{op} {v}, {t}, {v}')
    def rbf(dst, src):
        A(f'v_cvt_pk_bf16_f32 {dst}, {src}, {src}\nv_and_b32 {dst}, 0xffff0000, {dst}')
    def tagcheck(acc, tags):
        A(f'v_xor_b32 {acc}, s31, {tags[0]}')
        for t in tags[1:]: A(f'v_bitop3_b32 {acc}, {t}, s31, {acc} bitop3:0xbe')
    def mktag():
        A('s_mul_i32 s31, s31, 0x9E3779B1\ns_add_u32 s31, s31, 0x7F4A7C15')

    A.raw(HEADER.rstrip('\n'))
    A.raw(f'; @launch grid=(256,1,1) block=(384,1,1) lds={LDS_BYTES}')
    A.raw('.amdgcn_target "amdgcn-amd-amdhsa--gfx950"\n.text')
    A.raw(f'.globl {KN}\n.p2align 8\n.type {KN},@function\n{KN}:')
    stamp(0)
    A('s_cmp_ge_u32 s2, 256\ns_cbranch_scc1 L_end')
    A('s_load_dwordx16 s[4:19], s[0:1], 0\ns_load_dwordx8 s[20:27], s[0:1], 64')
    A('v_lshrrev_b32 v1, 6, v0\nv_and_b32 v0, 63, v0\nv_readfirstlane_b32 s28, v1')
    A('s_and_b32 s29, s2, 7\ns_lshr_b32 s30, s2, 3\ns_mov_b32 s62, 0\ns_mov_b32 s63, 0x40000')
    A('v_lshrrev_b32 v3, 4, v0                 ; q4 = lane>>4')
    A('s_cmp_eq_u32 s28, 0\ns_cbranch_scc1 L_Q\ns_cmp_lg_u32 s28, 1\ns_cbranch_scc1 L_A')
    A('s_setprio 3')
    A('v_lshrrev_b32 v2, 3, v0\nv_and_b32 v4, 7, v0\nv_lshlrev_b32 v5, 1, v3\nv_xor_b32 v4, v4, v5\nv_lshlrev_b32 v4, 4, v4')
    A('s_lshr_b32 s32, s30, 3\ns_and_b32 s33, s30, 7\ns_lshl_b32 s32, s32, 20\ns_lshl_b32 s33, s33, 7\ns_lshl_b32 s34, s29, 10')
    A('s_add_u32 s32, s32, s33\ns_add_u32 s32, s32, s34')
    A('v_lshl_add_u32 v6, v2, 13, v4\nv_add_u32 v6, s32, v6')
    A('s_mov_b32 s35, 0x10000\ns_movk_i32 s36, 0x400\ns_movk_i32 s37, 0x1000\ns_mov_b32 m0, 0')
    A('s_lshl_b32 s32, s29, 24\ns_lshl_b32 s33, s30, 15\ns_add_u32 s32, s32, s33\ns_add_u32 s32, s32, 0xF00000')
    A('v_and_b32 v7, 15, v0\nv_xor_b32 v8, v7, v3\nv_lshlrev_b32 v8, 4, v8\nv_lshl_add_u32 v8, v3, 8, v8\nv_add_u32 v8, s32, v8')
    A('v_xor_b32 v9, 64, v8\nv_xor_b32 v10, 0x80, v8\nv_xor_b32 v11, 0xc0, v8')
    A('v_xor_b32 v12, v7, v5\nv_lshlrev_b32 v12, 4, v12\nv_lshl_add_u32 v12, v3, 8, v12\nv_add_u32 v12, s32, v12\nv_xor_b32 v13, 0x80, v12')
    A('s_waitcnt lgkmcnt(0)')
    stamp(1)
    groups = []
    def g_w(vreg, ptr, adv):
        def f():
            for k in range(4):
                A(f'global_load_lds_dwordx4 {vreg}, {ptr} {pol}')
                A(f's_add_u32 m0, m0, s36\nv_add_u32 {vreg}, {adv[k]}, {vreg}')
        return f
    def g_kv(vr, lo):
        def f():
            for k in range(4):
                A(f'global_load_lds_dwordx4 {vr[k]}, s[{lo}:{lo+1}] offset:{1024*k} {pol}')
            A(f's_add_u32 m0, m0, s37\ns_add_u32 s{lo}, s{lo}, s37\ns_addc_u32 s{lo+1}, s{lo+1}, 0')
        return f
    groups += [g_w('v6', 's[10:11]', ['s35']*4)]*4
    groups += [g_kv(['v8','v9','v10','v11'], 6)]*8
    groups += [g_kv(['v12','v13','v12','v13'], 8)]*8
    groups += [g_w('v14', 's[16:17]', ['s38']*4)]*4
    groups += [g_w('v15', 's[12:13]', ['s44','s45','s44','s46'])]*4
    groups += [g_w('v16', 's[20:21]', ['s39']*4)]*2
    def late_setup():
        A('s_load_dword s31, s[26:27], 0')
        A('s_and_b32 s32, s29, 1\ns_cmp_eq_u32 s32, 1\ns_cselect_b32 s16, s18, s16\ns_cselect_b32 s17, s19, s17')
        A(f's_lshr_b32 s32, s29, 1\ns_mul_i32 s32, s32, {128*3584}\ns_lshl_b32 s33, s30, 7\ns_add_u32 s32, s32, s33')
        A(f's_movk_i32 s33, 3584\nv_mad_u32_u24 v14, v2, s33, v4\nv_add_u32 v14, s32, v14')
        A('s_lshl_b32 s32, s30, 16\ns_lshl_b32 s33, s29, 7\ns_add_u32 s32, s32, s33')
        A('v_lshl_add_u32 v16, v2, 10, v4\nv_add_u32 v16, s32, v16')
        A(f's_cmp_lt_u32 s30, 28\ns_cselect_b32 s34, -1, 0\ns_cselect_b32 s38, {8*3584}, 0\ns_cselect_b32 s39, 0x2000, 0')
        A('v_and_b32 v14, s34, v14\nv_and_b32 v16, s34, v16')
        A('v_lshrrev_b32 v17, 5, v0\nv_lshlrev_b32 v17, 2, v17\nv_bfe_u32 v18, v0, 4, 1\nv_add_u32 v17, v17, v18\nv_bfe_u32 v18, v0, 3, 1\nv_lshl_add_u32 v17, v18, 4, v17')
        A('s_lshl_b32 s32, s30, 17\ns_add_u32 s32, s32, s33\nv_lshl_add_u32 v15, v17, 10, v4\nv_add_u32 v15, s32, v15')
        A(f's_movk_i32 s44, {8*1024}\ns_movk_i32 s45, {-6*1024}\ns_movk_i32 s46, {22*1024}')
        A(f'v_lshlrev_b32 v21, 2, v0\nv_add_u32 v21, {MISC+O_LAND}, v21')
    NG = len(groups)
    def flag(n):
        A(f'v_mov_b32 v20, {n}\nds_write_b32 v21, v20')
    for gi, g in enumerate(groups):
        if gi == WG:
            stamp(2)
            A('s_barrier')
            late_setup()
        if gi >= WG:
            A(f's_waitcnt vmcnt({4*(WG-1)})' + (' lgkmcnt(0)' if gi == WG else ''))
            flag(4*(gi-WG+1))
            if 4*(gi-WG+1) in (16,48,80): stamp({16:3,48:4,80:5}[4*(gi-WG+1)])
        g()
    stamp(6)
    A('v_lshrrev_b32 v22, 1, v0\nv_and_b32 v23, 1, v0')
    A(f's_lshl_b32 s32, s29, 15\ns_lshl_b32 s33, s30, 5\ns_add_u32 s32, s32, s33\ns_add_u32 s32, s32, {WS_H3}')
    A('v_lshlrev_b32 v24, 4, v23\nv_lshl_add_u32 v25, v22, 9, v24\nv_add_u32 v25, s32, v25       ; s-partials')
    A('v_min_u32 v26, 27, v22\nv_lshl_add_u32 v26, v26, 9, v24\nv_add_u32 v26, s32, v26\nv_add_u32 v26, 0x4000, v26   ; y-partials')
    A('s_lshl_b32 s32, s29, 7\ns_lshl_b32 s33, s30, 3\ns_add_u32 s32, s32, s33')
    A('v_lshrrev_b32 v27, 5, v0\nv_lshl_add_u32 v27, v23, 1, v27\nv_lshlrev_b32 v27, 1, v27\nv_add_u32 v27, s32, v27')
    mktag()
    for k in range(WG-1, -1, -1):
        n = 4*(NG-k)
        A(f's_waitcnt vmcnt({4*k})')
        flag(n)
        if n in (96,): stamp(7)
    stamp(8)
    A('s_cmp_ge_u32 s30, 16\ns_cbranch_scc1 L_fin')
    A('global_load_ushort v28, v27, s[4:5]\nglobal_load_ushort v29, v27, s[22:23]')
    A('v_cmp_gt_u32 vcc, 28, v22\nv_cndmask_b32 v30, 0, 1.0, vcc')
    lp = lab('f')
    A(f'{lp}:')
    A('global_load_dwordx4 v[32:35], v25, s[26:27] sc1\nglobal_load_dwordx4 v[36:39], v26, s[26:27] sc1')
    tmo()
    A('s_waitcnt vmcnt(0)')
    tagcheck('v31', ['v33','v35','v37','v39'])
    A(f'v_cmp_ne_u32 vcc, 0, v31\ns_mov_b64 exec, vcc\ns_cbranch_execnz {lp}\ns_mov_b64 exec, -1')
    stamp(9)
    A('v_mul_f32 v36, v36, v30\nv_mul_f32 v38, v38, v30')
    for k in (2,4,8):
        for r in ('v32','v34','v36','v38'):
            A(f'v_add_f32_dpp {r}, {r}, {r} row_ror:{k} row_mask:0xf bank_mask:0xf')
    A('v_permlane32_swap_b32 v32, v34\nv_permlane32_swap_b32 v36, v38\nv_add_f32 v32, v32, v34\nv_add_f32 v36, v36, v38')
    A('v_mov_b32 v34, v32\nv_mov_b32 v38, v36\nv_permlane16_swap_b32 v34, v32\nv_permlane16_swap_b32 v38, v36\nv_add_f32 v32, v32, v34\nv_add_f32 v36, v36, v38')
    rbf('v36', 'v36'); rbf('v32', 'v32')
    A(f'v_mul_f32 v37, 0x{LOG2E ^ 0x80000000:08x}, v36\nv_exp_f32 v37, v37\nv_add_f32 v37, 1.0, v37\nv_rcp_f32 v37, v37\nv_mul_f32 v36, v36, v37')
    rbf('v36', 'v36')
    A('v_mul_f32 v32, v32, v36')
    rbf('v32', 'v32')
    A('v_lshlrev_b32 v28, 16, v28\nv_add_f32 v32, v28, v32\nv_cvt_pk_bf16_f32 v32, v32, v32')
    A('s_mov_b32 exec_lo, 3\ns_mov_b32 exec_hi, 3\nglobal_store_short v27, v32, s[22:23]')
    A('s_cmp_lg_u32 s2, 0\ns_cbranch_scc1 L_fin')
    A('s_mov_b64 exec, 1\nv_mov_b32 v33, 0\nv_mov_b32 v34, s31\nglobal_store_dword v33, v34, s[26:27] sc1')
    A('L_fin:')
    stamp(10)
    dump_stamps()
    A('s_endpgm')

    A('L_Q:')
    A('v_lshlrev_b32 v2, 4, v0')
    A('s_waitcnt lgkmcnt(0)')
    A('global_load_dwordx4 v[8:11], v2, s[4:5]')
    A('s_load_dword s31, s[26:27], 0')
    stamp(1)
    if codepf:
        A(f's_getpc_b64 s[40:41]\nL_pc:\ns_sub_u32 s40, s40, L_pc-{KN}\ns_subb_u32 s41, s41, 0')
        A(f'v_lshlrev_b32 v4, 7, v0\nv_min_u32 v4, L_end-{KN}, v4\nglobal_load_dword v39, v4, s[40:41]')
    A('v_bfe_u32 v4, v0, 2, 2               ; r\nv_lshl_add_u32 v4, v3, 2, v4          ; 4*q4+r\nv_bfe_u32 v6, v4, 1, 2               ; g')
    A('v_and_b32 v7, 3, v0\nv_lshlrev_b32 v7, 3, v7\nv_lshl_add_u32 v7, v4, 7, v7')
    A('v_lshl_add_u32 v40, v6, 5, v7\nv_xor_b32 v41, 32, v40\nv_xor_b32 v42, 64, v40\nv_xor_b32 v43, 0x60, v40')
    A(f'v_lshlrev_b32 v44, 2, v0\nv_add_u32 v44, {MISC+O_LAND}, v44')
    A(f'v_add_u32 v45, {MISC+O_XN}, v2')
    A(f's_lshr_b32 s32, s30, 3\ns_lshl_b32 s32, s32, 8\ns_add_u32 s32, s32, {MISC+O_XN}\nv_lshl_add_u32 v46, v3, 3, s32')
    A(f's_lshr_b32 s32, s29, 1\ns_lshl_b32 s32, s32, 8\ns_add_u32 s32, s32, {MISC+O_XN}\nv_lshl_add_u32 v47, v3, 3, s32')
    A('s_and_b32 s33, s30, 7\ns_lshr_b32 s34, s33, 1\ns_lshl_b32 s34, s34, 12\ns_and_b32 s33, s33, 1\ns_lshl_b32 s33, s33, 9\ns_add_u32 s34, s34, s33')
    A(f's_lshr_b32 s33, s30, 3\ns_lshl_b32 s33, s33, 10\ns_add_u32 s34, s34, s33\ns_lshl_b32 s33, s29, 14\ns_add_u32 s34, s34, s33\ns_add_u32 s34, s34, {WS_H1S}')
    A('v_lshl_add_u32 v48, v0, 3, s34')
    A('s_barrier')
    A(f's_waitcnt vmcnt({1 if codepf else 0})')
    stamp(2)
    for i in range(4):
        A(f'v_lshlrev_b32 v{12+2*i}, 16, v{8+i}\nv_and_b32 v{13+2*i}, 0xffff0000, v{8+i}')
    A('v_add_f32 v20, v12, v13\nv_add_f32 v21, v14, v15\nv_add_f32 v22, v16, v17\nv_add_f32 v23, v18, v19\nv_add_f32 v20, v20, v21\nv_add_f32 v22, v22, v23\nv_add_f32 v20, v20, v22')
    allred('v20', 'v21')
    A('v_mul_f32 v20, 0x3b000000, v20        ; mean')
    A('v_sub_f32 v22, v12, v20\nv_mul_f32 v21, v22, v22')
    for i in range(1, 8):
        A(f'v_sub_f32 v22, v{12+i}, v20\nv_fmac_f32 v21, v22, v22')
    allred('v21', 'v22')
    A('v_mul_f32 v21, 0x3b000000, v21        ; var')
    rbf('v20', 'v20'); rbf('v21', 'v21')
    A('v_add_f32 v21, 0x3727c5ac, v21')
    rbf('v21', 'v21')
    A('v_sqrt_f32 v21, v21')
    rbf('v21', 'v21')
    A('v_rcp_f32 v21, v21')
    for i in range(8): A(f'v_sub_f32 v{12+i}, v{12+i}, v20')
    for i in range(4):
        A(f'v_cvt_pk_bf16_f32 v{8+i}, v{12+2*i}, v{13+2*i}')
    for i in range(4):
        A(f'v_lshlrev_b32 v{12+2*i}, 16, v{8+i}\nv_and_b32 v{13+2*i}, 0xffff0000, v{8+i}')
    for i in range(8): A(f'v_mul_f32 v{12+i}, v{12+i}, v21')
    for i in range(4):
        A(f'v_cvt_pk_bf16_f32 v{8+i}, v{12+2*i}, v{13+2*i}')
    A('ds_write_b128 v45, v[8:11]')
    for ks in range(4):
        A(f'ds_read2_b64 v[{52+4*ks}:{55+4*ks}], v46 offset0:{8*ks} offset1:{8*ks+4}')
    stamp(3)
    def gemv(base_thr, nks, areg, tb_off, pre=False):
        for ks in range(nks):
            wait_land(base_thr + 4*(ks+1), 'v44', 'v5', sleep=(ks == 0))
            for nt in range(4):
                for e in range(2):
                    A(f'ds_read_b64_tr_b16 v[{68+4*nt+2*e}:{69+4*nt+2*e}], v{40+nt} offset:{tb_off+ks*4096+e*2048}')
            for nt in range(4):
                A(f's_waitcnt lgkmcnt({6-2*nt})')
                c = '0' if ks == 0 else f'v[{84+4*nt}:{87+4*nt}]'
                A(f'v_mfma_f32_16x16x32_bf16 v[{84+4*nt}:{87+4*nt}], v[{areg+4*ks}:{areg+4*ks+3}], v[{68+4*nt}:{71+4*nt}], {c}')
    def select(dst):
        A(f'v_mov_b32 {dst}, v84')
        for k in (1,2,3):
            A(f'v_mov_b32_dpp {dst}, v{84+4*k} quad_perm:[0,1,2,3] row_mask:{1<<k} bank_mask:0xf')
    A('s_waitcnt lgkmcnt(0)')
    mktag()
    A('v_mov_b32 v51, s31')
    gemv(0, 4, 52, 0)
    select('v50')
    if fast1:
        A(f'v_add_u32 v49, {WS_H1F-WS_H1S}, v48\nglobal_store_dwordx2 v49, v[50:51], s[26:27]')
    A('global_store_dwordx2 v48, v[50:51], s[26:27] sc1')
    stamp(4)
    A('s_cmp_ge_u32 s30, 28\ns_cbranch_scc1 L_Qend')
    for ks in range(4):
        A(f'ds_read2_b64 v[{52+4*ks}:{55+4*ks}], v47 offset0:{8*ks} offset1:{8*ks+4}')
    for nt in range(4): A(f'v_add_u32 v{40+nt}, {L_GU}, v{40+nt}')
    A(f's_lshl_b32 s32, s30, 12\ns_add_u32 s32, s32, {WS_HF1}\nv_lshl_add_u32 v49, v0, 4, s32')
    A('s_lshl_b32 s33, s29, 9\ns_add_u32 s32, s32, s33\nv_lshl_add_u32 v48, v0, 3, s32')
    A(f's_lshl_b32 s32, s29, 15\ns_lshl_b32 s33, s30, 9\ns_add_u32 s32, s32, s33\ns_add_u32 s32, s32, {WS_H3+0x4000}\nv_lshl_add_u32 v6, v0, 3, s32')
    A(f'v_and_b32 v7, 31, v0\nv_lshlrev_b32 v7, 2, v7\nv_add_u32 v7, {MISC+O_HB}, v7\nv_lshlrev_b32 v4, 3, v3\nv_add_u32 v4, {MISC+O_HB}, v4')
    A('s_waitcnt lgkmcnt(0)')
    gemv(80, 4, 52, 0)
    select('v50')
    A('global_store_dwordx2 v48, v[50:51], s[26:27] sc1')
    stamp(5)
    lp = lab('hf')
    first = lab('hfa')
    for i in range(4):
        A(f'global_load_dwordx4 v[{8+4*i}:{11+4*i}], v49, s[26:27] offset:{1024*i} sc1')
    wait_land(120, 'v44', 'v5')
    for ks in range(2):
        for nt in range(4):
            for e in range(2):
                r = 100+16*ks+4*nt+2*e
                A(f'ds_read_b64_tr_b16 v[{r}:{r+1}], v{40+nt} offset:{L_WD-L_GU+ks*4096+e*2048}')
    A(f's_branch {first}')
    A(f'{lp}:')
    for i in range(4):
        A(f'global_load_dwordx4 v[{8+4*i}:{11+4*i}], v49, s[26:27] offset:{1024*i} sc1')
    tmo()
    A(f'{first}:')
    A('s_waitcnt vmcnt(0)')
    tagcheck('v5', [f'v{9+2*i}' for i in range(8)])
    A(f'v_cmp_ne_u32 vcc, 0, v5\ns_mov_b64 exec, vcc\ns_cbranch_execnz {lp}\ns_mov_b64 exec, -1')
    stamp(6)
    A('v_add_f32 v8, v8, v12\nv_add_f32 v10, v10, v14\nv_add_f32 v16, v16, v20\nv_add_f32 v18, v18, v22\nv_add_f32 v8, v8, v16\nv_add_f32 v10, v10, v18')
    A('v_cvt_pk_bf16_f32 v8, v8, v10\nv_mov_b32 v9, v8\nv_permlane32_swap_b32 v8, v9')
    A('v_lshlrev_b32 v10, 16, v8\nv_and_b32 v11, 0xffff0000, v8\nv_lshlrev_b32 v12, 16, v9\nv_and_b32 v13, 0xffff0000, v9')
    import struct
    f2u = lambda f: struct.unpack('<I', struct.pack('<f', f))[0]
    c1 = -2*0.7978845608028654*1.4426950408889634
    A(f's_mov_b32 s32, 0x{f2u(c1*0.044715):08x}\nv_mov_b32 v18, 0x{f2u(c1):08x}')
    A('v_mul_f32 v14, v10, v10\nv_mul_f32 v15, v11, v11\nv_fma_f32 v14, v14, s32, v18\nv_fma_f32 v15, v15, s32, v18\nv_mul_f32 v14, v14, v10\nv_mul_f32 v15, v15, v11')
    A('v_exp_f32 v14, v14\nv_exp_f32 v15, v15\nv_add_f32 v14, 1.0, v14\nv_add_f32 v15, 1.0, v15\nv_rcp_f32 v14, v14\nv_rcp_f32 v15, v15\nv_mul_f32 v10, v10, v14\nv_mul_f32 v11, v11, v15')
    A('v_cvt_pk_bf16_f32 v8, v10, v11\nv_lshlrev_b32 v10, 16, v8\nv_and_b32 v11, 0xffff0000, v8\nv_mul_f32 v10, v10, v12\nv_mul_f32 v11, v11, v13\nv_cvt_pk_bf16_f32 v8, v10, v11')
    A('ds_write_b32 v7, v8')
    A('ds_read2_b64 v[52:55], v4 offset0:0 offset1:4\nds_read2_b64 v[56:59], v4 offset0:8 offset1:12\ns_waitcnt lgkmcnt(0)')
    for ks in range(2):
        for nt in range(4):
            c = '0' if ks == 0 else f'v[{84+4*nt}:{87+4*nt}]'
            r = 100+16*ks+4*nt
            A(f'v_mfma_f32_16x16x32_bf16 v[{84+4*nt}:{87+4*nt}], v[{52+4*ks}:{55+4*ks}], v[{r}:{r+3}], {c}')
    select('v50')
    A('global_store_dwordx2 v6, v[50:51], s[26:27] sc1')
    A('L_Qend:')
    stamp(7)
    dump_stamps()
    A('s_endpgm')

    A('L_A:')
    A('s_sub_u32 s28, s28, 2                 ; w')
    A(f'v_lshlrev_b32 v8, 2, v0\nv_add_u32 v8, {MISC}, v8')
    A('s_cmp_lg_u32 s28, 0\ns_cbranch_scc1 L_A1')
    A('v_mov_b32 v4, 0\nv_cmp_lt_u32 vcc, 15, v0\nv_cndmask_b32 v5, 0, -1, vcc\nds_write_b32 v8, v4\nds_write_b32 v8, v5 offset:0x100')
    A('L_A1:')
    A('v_and_b32 v2, 15, v0                  ; c\nv_lshrrev_b32 v9, 2, v2               ; c>>2')
    A(f's_lshl_b32 s32, s28, 13\ns_add_u32 s32, s32, {L_K}\nv_xor_b32 v10, v3, v2\nv_lshlrev_b32 v10, 4, v10\nv_lshl_add_u32 v10, v2, 8, v10\nv_add_u32 v10, s32, v10')
    A('v_xor_b32 v11, 64, v10\nv_xor_b32 v12, 0x80, v10\nv_xor_b32 v13, 0xc0, v10')
    A(f'v_mul_u32_u24 v14, {QBS}, v9\nv_lshl_add_u32 v14, v3, 4, v14\nv_add_u32 v14, {MISC+O_QB}, v14')
    A(f's_mul_i32 s32, s28, {QBS}\ns_add_u32 s32, s32, {O_QB}\nv_add_u32 v15, s32, v8')
    A(f'v_mov_b32 v16, {MISC}\ns_lshl_b32 s33, s28, 2\ns_add_u32 s33, s33, {MISC}\nv_mov_b32 v17, s33')
    A(f'v_lshl_add_u32 v18, v9, 4, v16\nv_lshl_add_u32 v19, v9, 4, v17      ; + 4w\nv_lshl_add_u32 v20, v3, 4, v16      ; MISC + q4*16')
    A(f'v_lshlrev_b32 v4, 4, v0\nv_add_u32 v21, {MISC+O_P}, v4\ns_lshl_b32 s32, s28, 10\nv_add_u32 v22, s32, v21')
    A('v_bfe_u32 v5, v0, 2, 2\nv_lshl_add_u32 v5, v3, 2, v5          ; 4*q4+r\nv_and_b32 v6, 3, v0\nv_lshlrev_b32 v6, 3, v6')
    A(f'v_and_b32 v7, 7, v5\ns_lshl_b32 s32, s28, 1\nv_xor_b32 v7, s32, v7\nv_lshl_add_u32 v7, v7, 5, v6\nv_lshl_add_u32 v23, v5, 8, v7\nv_add_u32 v23, {L_V}, v23\nv_xor_b32 v24, 32, v23')
    A(f'v_bfe_u32 v7, v5, 1, 2\nv_xor_b32 v7, s28, v7\nv_lshl_add_u32 v7, v7, 5, v6\nv_lshl_add_u32 v25, v5, 7, v7\nv_add_u32 v25, {L_WO}, v25')
    A(f's_lshl_b32 s32, s29, 14\ns_lshl_b32 s33, s28, 12\ns_add_u32 s32, s32, s33\ns_add_u32 s32, s32, {WS_H1F if fast1 else WS_H1S}\nv_add_u32 v26, s32, v4')
    A(f's_lshl_b32 s32, s29, 16\ns_add_u32 s32, s32, s33\ns_lshl_b32 s34, s30, 7\ns_add_u32 s32, s32, s34\ns_add_u32 s32, s32, {WS_H2}')
    A('v_lshlrev_b32 v27, 3, v2\nv_lshl_add_u32 v27, v3, 14, v27\nv_add_u32 v27, s32, v27')
    A(f's_lshl_b32 s32, s30, 14\ns_add_u32 s32, s32, s33\ns_add_u32 s32, s32, {WS_H2}\nv_add_u32 v28, s32, v4')
    A(f's_lshl_b32 s32, s29, 15\ns_lshl_b32 s33, s30, 9\ns_add_u32 s32, s32, s33\ns_lshl_b32 s33, s28, 7\ns_add_u32 s32, s32, s33\ns_add_u32 s32, s32, {WS_H3}\nv_lshl_add_u32 v29, v0, 3, s32')
    A('v_bfe_u32 v5, v0, 1, 2\nv_lshrrev_b32 v6, 5, v0\nv_lshlrev_b32 v6, 1, v6\nv_xor_b32 v5, v5, v6\nv_lshlrev_b32 v5, 4, v5\nv_and_b32 v6, 1, v0\nv_lshl_add_u32 v5, v6, 3, v5')
    A(f'v_lshl_add_u32 v5, v3, 8, v5\nv_bfe_u32 v6, v0, 3, 1\nv_lshl_add_u32 v5, v6, 10, v5\ns_lshl_b32 s32, s28, 11\ns_add_u32 s32, s32, {MISC+O_ST}\nv_add_u32 v30, s32, v5')
    A(f'v_lshrrev_b32 v5, 3, v2\nv_lshlrev_b32 v5, 1, v5\nv_xor_b32 v5, v3, v5\nv_lshlrev_b32 v5, 4, v5\nv_lshl_add_u32 v5, v2, 6, v5\nv_add_u32 v31, {MISC+O_ST}, v5')
    A('s_waitcnt lgkmcnt(0)\ns_load_dword s31, s[26:27], 0\ns_barrier')
    A('s_waitcnt lgkmcnt(0)')
    mktag()
    stamp(1)
    wait_land(N1, 'v8', 'v4')
    lp = lab('h1'); first = lab('h1a')
    for i in range(4):
        A(f'global_load_dwordx4 v[{88+4*i}:{91+4*i}], v26, s[26:27] offset:{1024*i} sc1')
    stamp(2)
    A('s_lshl_b32 s32, s28, 3\ns_add_u32 s32, s32, 24')
    wait_land('s32', 'v8', 'v4')
    for t in range(2):
        for st in range(4):
            r = 32+16*t+4*st
            A(f'ds_read_b128 v[{r}:{r+3}], v{10+st} offset:{4096*t}')
    A(f's_branch {first}')
    A(f'{lp}:')
    if fast1: A(f'v_xor_b32 v26, {WS_H1F ^ WS_H1S}, v26')
    for i in range(4):
        A(f'global_load_dwordx4 v[{88+4*i}:{91+4*i}], v26, s[26:27] offset:{1024*i} sc1')
    tmo()
    A(f'{first}:')
    A('s_waitcnt vmcnt(0)')
    tagcheck('v4', [f'v{89+2*i}' for i in range(8)])
    A(f'v_cmp_ne_u32 vcc, 0, v4\ns_mov_b64 exec, vcc\ns_cbranch_execnz {lp}\ns_mov_b64 exec, -1')
    stamp(3)
    A('v_add_f32 v88, v88, v92\nv_add_f32 v90, v90, v94\nv_add_f32 v96, v96, v100\nv_add_f32 v98, v98, v102\nv_add_f32 v88, v88, v96\nv_add_f32 v90, v90, v98')
    A(f'v_cvt_pk_bf16_f32 v88, v88, v90\nv_mov_b32 v89, 1\nds_write_b32 v15, v88\nds_write_b32 v17, v89 offset:{O_FA}')
    lp = lab('sa')
    A(f'{lp}:')
    A(f'ds_read_b128 v[4:7], v16 offset:{O_FA}')
    for st in range(4): A(f'ds_read_b128 v[{64+4*st}:{67+4*st}], v14 offset:{64*st}')
    tmo()
    A(f's_waitcnt lgkmcnt(0)\nv_and_b32 v4, v4, v5\nv_and_b32 v6, v6, v7\nv_and_b32 v4, v4, v6\nv_cmp_eq_u32 vcc, 0, v4\ns_cbranch_vccnz {lp}')
    for st in range(4):
        for t in range(2):
            c = '0' if st == 0 else f'v[{80+4*t}:{83+4*t}]'
            r = 32+16*t+4*st
            A(f'v_mfma_f32_16x16x32_bf16 v[{80+4*t}:{83+4*t}], v[{r}:{r+3}], v[{64+4*st}:{67+4*st}], {c}')
    A('s_mov_b32 s34, 0x3db504f3')
    for i in range(4): A(f'v_cvt_pk_bf16_f32 v{88+i}, v{80+2*i}, v{81+2*i}')
    for i in range(4): A(f'v_lshlrev_b32 v{80+2*i}, 16, v{88+i}\nv_and_b32 v{81+2*i}, 0xffff0000, v{88+i}')
    for i in range(8): A(f'v_mul_f32 v{80+i}, s34, v{80+i}')
    for i in range(4): A(f'v_cvt_pk_bf16_f32 v{88+i}, v{80+2*i}, v{81+2*i}')
    for i in range(4): A(f'v_lshlrev_b32 v{80+2*i}, 16, v{88+i}\nv_and_b32 v{81+2*i}, 0xffff0000, v{88+i}')
    A('v_max3_f32 v4, v80, v81, v82\nv_max3_f32 v5, v83, v84, v85\nv_max3_f32 v4, v4, v86, v87\nv_max_f32 v4, v4, v5')
    xrow('v4', 'v5', 'v_max_f32')
    A(f'ds_write_b32 v19, v4 offset:{O_MX}')
    lp = lab('sb')
    A(f'{lp}:')
    A(f'ds_read_b128 v[4:7], v18 offset:{O_MX}')
    tmo()
    A(f's_waitcnt lgkmcnt(0)\nv_max3_u32 v88, v4, v5, v6\nv_max_u32 v88, v88, v7\nv_cmp_eq_u32 vcc, -1, v88\ns_cbranch_vccnz {lp}')
    A(f's_mov_b32 s35, 0x{LOG2E:08x}\nv_max3_f32 v4, v4, v5, v6\nv_max_f32 v4, v4, v7\nv_mul_f32 v4, s35, v4')
    for i in range(8): A(f'v_fma_f32 v{80+i}, v{80+i}, s35, -v4')
    for i in range(8): A(f'v_exp_f32 v{80+i}, v{80+i}')
    for i in range(4): A(f'v_cvt_pk_bf16_f32 v{88+i}, v{80+2*i}, v{81+2*i}')
    A('ds_write_b128 v22, v[88:91]')
    A('v_add_f32 v80, v80, v81\nv_add_f32 v82, v82, v83\nv_add_f32 v84, v84, v85\nv_add_f32 v86, v86, v87\nv_add_f32 v80, v80, v82\nv_add_f32 v84, v84, v86\nv_add_f32 v80, v80, v84')
    xrow('v80', 'v5')
    A(f'ds_write_b32 v19, v80 offset:{O_LS}')
    lp = lab('sc')
    A(f'{lp}:')
    A(f'ds_read_b128 v[4:7], v20 offset:{O_LS}\nds_read_b128 v[92:95], v20 offset:{O_MX}')
    for ks in range(4): A(f'ds_read_b128 v[{32+4*ks}:{35+4*ks}], v21 offset:{1024*ks}')
    tmo()
    A(f's_waitcnt lgkmcnt(0)\nv_max3_u32 v88, v4, v5, v6\nv_max_u32 v88, v88, v7\nv_cmp_eq_u32 vcc, -1, v88\ns_cbranch_vccnz {lp}')
    stamp(4)
    A('v_add_f32 v4, v4, v5\nv_add_f32 v6, v6, v7\nv_add_f32 v4, v4, v6\nv_max3_f32 v92, v92, v93, v94\nv_max_f32 v92, v92, v95')
    A('v_log_f32 v5, v4\nv_rcp_f32 v96, v4\nv_fma_f32 v102, v92, s35, v5\nv_mov_b32 v103, s31')
    for ks in range(4):
        last = ks == 3
        rb = 48 + 8*(ks & 1)
        if not last:
            wait_land(48+8*(ks+1), 'v8', 'v4', sleep=False)
            for a in range(2):
                for e in range(2):
                    A(f'ds_read_b64_tr_b16 v[{rb+4*a+2*e}:{rb+4*a+2*e+1}], v{23+a} offset:{ks*8192+e*4096}')
            A('s_waitcnt lgkmcnt(0)')
        else:
            lp = lab('vl')
            A(f'{lp}:')
            A('ds_read_b32 v4, v8')
            for a in range(2):
                for e in range(2):
                    A(f'ds_read_b64_tr_b16 v[{rb+4*a+2*e}:{rb+4*a+2*e+1}], v{23+a} offset:{ks*8192+e*4096}')
            tmo()
            A(f's_waitcnt lgkmcnt(0)\nv_cmp_gt_u32 vcc, 80, v4\ns_cbranch_vccnz {lp}')
        for a in range(2):
            c = '0' if ks == 0 else f'v[{80+4*a}:{83+4*a}]'
            A(f'v_mfma_f32_16x16x32_bf16 v[{80+4*a}:{83+4*a}], v[{32+4*ks}:{35+4*ks}], v[{rb+4*a}:{rb+4*a+3}], {c}')
    stamp(5)
    A('v_mul_f32 v80, v80, v96\nv_mul_f32 v84, v84, v96\nv_cvt_pk_bf16_f32 v100, v80, v84')
    A('v_mov_b32_dpp v101, v100 quad_perm:[1,0,3,2] row_mask:0xf bank_mask:0xf')
    A('s_mov_b32 exec_lo, 0x55555555\ns_mov_b32 exec_hi, 0x55555555\nglobal_store_dwordx4 v27, v[100:103], s[26:27] sc1\ns_mov_b64 exec, -1')
    stamp(6)
    lp = lab('h2'); first = lab('h2a')
    wait_land(112, 'v8', 'v4')
    for i in range(4):
        A(f'global_load_dwordx4 v[{88+4*i}:{91+4*i}], v28, s[26:27] offset:{1024*i} sc1')
    for ks in range(4):
        for e in range(2):
            A(f'ds_read_b64_tr_b16 v[{64+4*ks+2*e}:{65+4*ks+2*e}], v25 offset:{ks*4096+e*2048}')
    A(f's_branch {first}')
    A(f'{lp}:')
    for i in range(4):
        A(f'global_load_dwordx4 v[{88+4*i}:{91+4*i}], v28, s[26:27] offset:{1024*i} sc1')
    tmo()
    A(f'{first}:')
    A('s_waitcnt vmcnt(0)')
    tagcheck('v4', [f'v{91+4*i}' for i in range(4)])
    A(f'v_cmp_ne_u32 vcc, 0, v4\ns_mov_b64 exec, vcc\ns_cbranch_execnz {lp}\ns_mov_b64 exec, -1')
    stamp(7)
    for i in range(4): A(f'ds_write_b64 v30, v[{88+4*i}:{89+4*i}] offset:{64*i}')
    A(f'v_mov_b32 v4, 1\nds_write_b32 v17, v4 offset:{O_FD}')
    A('v_max3_f32 v5, v90, v94, v98\nv_max_f32 v5, v5, v102')
    A('v_max_f32_dpp v5, v5, v5 row_ror:8 row_mask:0xf bank_mask:0xf')
    xrow('v5', 'v6', 'v_max_f32')
    for i in range(4): A(f'v_sub_f32 v{104+i}, v{90+4*i}, v5')
    for i in range(4): A(f'v_exp_f32 v{104+i}, v{104+i}')
    lp = lab('sd')
    A(f'{lp}:')
    A(f'ds_read_b128 v[4:7], v16 offset:{O_FD}')
    for ks in range(4):
        for f in range(2):
            r = 32+8*ks+4*f
            A(f'ds_read_b128 v[{r}:{r+3}], v31 offset:{2048*ks+1024*f}')
    tmo()
    A(f's_waitcnt lgkmcnt(0)\nv_and_b32 v4, v4, v5\nv_and_b32 v6, v6, v7\nv_and_b32 v4, v4, v6\nv_cmp_eq_u32 vcc, 0, v4\ns_cbranch_vccnz {lp}')
    sh = []
    sh += ['v_add_f32 v96, v104, v105', 'v_add_f32 v97, v106, v107', 'v_add_f32 v96, v96, v97']
    for i in range(4): sh.append(f'v_mov_b32 v{108+i}, v{104+i}')
    sh.append('v_add_f32_dpp v96, v96, v96 row_ror:8 row_mask:0xf bank_mask:0xf')
    for i in range(4): sh.append(f'v_mov_b32_dpp v{108+i}, v{104+i} row_ror:8 row_mask:0xf bank_mask:0xc')
    sh += ['v_mov_b32 v97, v96']
    for i in range(2): sh.append(f'v_mov_b32_dpp v{104+i}, v{104+i} row_ror:8 row_mask:0xf bank_mask:0x3')
    sh += ['v_permlane16_swap_b32 v97, v96', 'v_add_f32 v96, v97, v96', 'v_mov_b32 v97, v96']
    for i in range(2,4): sh.append(f'v_mov_b32_dpp v{104+i}, v{104+i} row_ror:8 row_mask:0xf bank_mask:0x3')
    sh += ['v_permlane32_swap_b32 v97, v96', 'v_add_f32 v96, v97, v96', 'v_rcp_f32 v96, v96']
    k = 0
    for ks in range(4):
        for f in range(2):
            c = '0' if ks == 0 else f'v[{80+4*f}:{83+4*f}]'
            r = 32+8*ks+4*f
            A(f'v_mfma_f32_16x16x32_bf16 v[{80+4*f}:{83+4*f}], v[{r}:{r+3}], v[{64+4*ks}:{67+4*ks}], {c}')
            for _ in range(3):
                if k < len(sh): A(sh[k]); k += 1
    while k < len(sh): A(sh[k]); k += 1
    A('v_mul_f32 v100, v108, v80\nv_mul_f32 v98, v104, v84')
    for i in range(1,4): A(f'v_fmac_f32 v100, v{108+i}, v{80+i}\nv_fmac_f32 v98, v{104+i}, v{84+i}')
    A('v_add_f32 v100, v100, v98')
    xrow('v100', 'v98')
    A('v_mul_f32 v100, v100, v96\nv_mov_b32 v101, s31')
    A('s_mov_b64 exec, 0xffff\nglobal_store_dwordx2 v29, v[100:101], s[26:27] sc1')
    stamp(8)
    if stamps: A('s_add_u32 s28, s28, 2')
    dump_stamps()
    A('L_end:\ns_endpgm')
    A.raw('.section .rodata,"a"\n.p2align 6')
    A.raw(f'.amdhsa_kernel {KN}\n  .amdhsa_next_free_vgpr 136\n  .amdhsa_next_free_sgpr 96\n  .amdhsa_accum_offset 136')
    A.raw('  .amdhsa_group_segment_fixed_size 0\n  .amdhsa_kernarg_size 96\n  .amdhsa_user_sgpr_count 2\n  .amdhsa_user_sgpr_kernarg_segment_ptr 1\n  .amdhsa_system_sgpr_workgroup_id_x 1\n.end_amdhsa_kernel')
    return A.text()

if __name__ == '__main__':
    kw = {}
    out = sys.argv[1]
    for a in sys.argv[2:]:
        k, v = a.split('=')
        kw[k] = eval(v)
    open(out, 'w').write(gen(**kw))
```
